```python
import torch

def _softmax(x, axis=-1):
    return torch.softmax(x, dim=axis)
def _gelu(x):
    return torch.nn.functional.gelu(x, approximate="tanh")
def _silu(x):
    return torch.nn.functional.silu(x)
def _sigmoid(x):
    return torch.sigmoid(x)
def _layernorm(x, axis=-1, eps=1e-5):
    m = x.mean(dim=axis, keepdim=True)
    v = x.var(dim=axis, keepdim=True, unbiased=False)
    return (x - m) / torch.sqrt(v + eps)
def _scatter_add(tgt, idx, src, axis=0):
    return tgt.clone().index_add_(axis, idx, src)
def _segment_sum(src, seg, n):
    out = torch.zeros((n,) + src.shape[1:], dtype=src.dtype)
    return out.index_add_(0, seg, src)
def _pad(x, pw):
    flat = tuple(v for pair in reversed(pw) for v in pair)
    return torch.nn.functional.pad(x, flat)

kernel_name = 'standalone__gqa_block_cached__decode'

def setup_inputs():

    _w = (lambda a: (lambda t: t.to(torch.bfloat16) if t.is_floating_point() else t)(torch.as_tensor(a)))
    B, Sq, D = 1, 1, 640
    Hq, Hkv, Sk, Dh = 32, 32, 32768, 192
    assert Hq % Hkv == 0, (Hq, Hkv)
    return {
        "x": _w((lambda *s: torch.randn(*s, dtype=torch.bfloat16) * 0.8)(B, Sq, D)),
        "k_cache": _w((lambda *s: torch.randn(*s, dtype=torch.bfloat16) * 0.8)(B, Hkv, Sk, Dh)),
        "v_cache": _w((lambda *s: torch.randn(*s, dtype=torch.bfloat16) * 0.05)(B, Hkv, Sk, Dh)),
        "wq": _w((lambda *s: torch.randn(*s, dtype=torch.bfloat16) * 0.8)(D, Hq * Dh) * (D ** -0.5)),
        "wo": _w((lambda *s: torch.randn(*s, dtype=torch.bfloat16) * 0.05)(Hq * Dh, D) * ((Hq * Dh) ** -0.5)),
    }

def reference(x, k_cache, v_cache, wq, wo):
    B, Sq, D = x.shape
    Hq, Dh = 32, 192
    Hkv = k_cache.shape[1]
    rep = Hq // Hkv
    q = (lambda x, *d: x.permute(*d))((x @ wq).reshape(B, Sq, Hq, Dh), 0, 2, 1, 3)
    k = (lambda x, n, axis: torch.repeat_interleave(x, n, dim=axis))(k_cache, rep, axis=1)
    v = (lambda x, n, axis: torch.repeat_interleave(x, n, dim=axis))(v_cache, rep, axis=1)
    scores = torch.einsum("bhqd,bhkd->bhqk", q, k) * (Dh ** -0.5)
    p = _softmax(scores, axis=-1)
    o = torch.einsum("bhqk,bhkd->bhqd", p, v)
    return (lambda x, *d: x.permute(*d))(o, 0, 2, 1, 3).reshape(B, Sq, Hq * Dh) @ wo
```

```python
import re
TRANS = ("v_exp_f32", "v_rcp_f32", "v_log_f32", "v_rsq_f32", "v_sqrt_f32")
def regs_of(tok):
    tok = tok.strip().lstrip("-").strip("|")
    m = re.fullmatch(r"([vsa])(\d+)", tok)
    if m: return {(m.group(1), int(m.group(2)))}
    m = re.fullmatch(r"([vsa])\[(\d+):(\d+)\]", tok)
    if m: return {(m.group(1), i) for i in range(int(m.group(2)), int(m.group(3)) + 1)}
    if tok in ("vcc", "vcc_lo", "vcc_hi"): return {("s", "vcc")}
    if tok in ("exec", "exec_lo", "exec_hi"): return {("s", "exec")}
    return set()

class Ins:
    def __init__(self, text):
        self.text = text
        t = text.split(";")[0].strip()
        parts = t.split(None, 1)
        self.op = parts[0]
        rest = parts[1] if len(parts) > 1 else ""
        ops = [o.strip() for o in re.split(r",(?![^\[]*\])", rest)] if rest else []
        self.mods = ""
        if ops:
            l = ops[-1].split(None, 1)
            ops[-1] = l[0]
            self.mods = l[1] if len(l) > 1 else ""
        self.ops = ops
        op = self.op
        self.valu = op.startswith("v_")
        self.vmem = op.startswith("buffer_") or op.startswith("global_")
        self.ds = op.startswith("ds_")
        self.dpp = self.valu and any(k in self.mods for k in ("quad_perm", "row_", "wave_", "bcast"))
        self.perm = op.startswith("v_permlane")
        self.trans = op.replace("_e32", "").replace("_e64", "") in TRANS
        self.dot = op.startswith("v_dot")
        self.rdlane = op.startswith("v_readfirstlane") or op.startswith("v_readlane")
        R = [regs_of(o) for o in ops]
        self.w = set(); self.r = set(); self.srcab = set(); self.stdata = set()
        if self.valu:
            if self.perm:
                self.w = R[0] | R[1]; self.r = R[0] | R[1]
            else:
                self.w = set(R[0])
                for x in R[1:]: self.r |= x
                if "fmac" in op or "dot2c" in op or self.dpp: self.r |= R[0]
                if "_co_" in op: self.w |= R[1]
            if self.dot: self.srcab = R[1] | R[2]
        elif self.vmem:
            if "load" in op:
                self.w = set(R[0])
                for x in R[1:]: self.r |= x
            else:
                for x in R: self.r |= x
                if "atomic" in op: self.w = set(R[0])
                if op.endswith("x4") or op.endswith("x3"):
                    self.stdata = R[0] if op.startswith("buffer_") else R[1]
        elif self.ds:
            if "read" in op or "rtn" in op:
                self.w = set(R[0])
                for x in R[1:]: self.r |= x
            else:
                for x in R: self.r |= x
        else:
            if R: self.w = set(R[0])
            for x in R[1:]: self.r |= x
        self.states = 1
        if op == "s_nop": self.states = int(ops[0]) + 1

def need(p, c):
    n = 0
    if p.valu:
        pv = {x for x in p.w if x[0] in "va"}; ps = {x for x in p.w if x[0] == "s"}
        if c.dpp and pv & c.r: n = max(n, 2)
        if c.perm and pv & c.r: n = max(n, 2)
        if p.trans and c.valu and pv & c.r: n = max(n, 1)
        if p.dot and pv & (c.r | c.w):
            if c.op == p.op and not (pv & c.srcab): pass
            else: n = max(n, 3)
        if c.valu and ps & c.r: n = max(n, 2)
        if c.vmem and ps & c.r: n = max(n, 5)
        if c.rdlane and pv & c.r: n = max(n, 1)
    if p.stdata and p.stdata & c.w: n = max(n, 2)
    return n

class Asm:
    def __init__(self):
        self.L = []; self.hist = []
    def raw(self, s): self.L.append(s)
    def label(self, s):
        self.L.append(s + ":")
    def __call__(self, text):
        c = Ins(text)
        pad = 0; dist = 0
        for p in reversed(self.hist):
            pad = max(pad, need(p, c) - dist)
            dist += p.states
            if dist > 6: break
        if pad > 0:
            n = Ins("s_nop %d" % (pad - 1)); self.L.append("    " + n.text); self.hist.append(n)
        self.L.append("    " + text); self.hist.append(c)
        self.hist = self.hist[-8:]
    def text(self): return "\n".join(self.L) + "\n"
```

```python
import sys, struct, math
sys.path.insert(0, "gen")
from asmlib import Asm

NAME = "standalone__gqa_block_cached__decode_kernel"
HS = 32768 * 384
TILE = 3072
C_SCALE = (192 ** -0.5) * math.log2(math.e)
def f32(x): return "0x%08x" % struct.unpack("<I", struct.pack("<f", x))[0]

WS_EPOCH = 0
WS_CNT = 0x1000
WS_QP = 0x10000
WS_OP = 0x90000
WS_YP = 0x110000
WS_TS = 0x200000
WS_SIZE = 0x400000
L_Q = 0
L_TAG = 384
L_TK = 512
L_PART = 1536
L_Y = 8192
LDS_BYTES = 10240

def gen(NS=21, W=2, inter=1, ts=0, spin=200000, W1=None, prio=1):
    NB = 4
    if W1 is None: W1 = W
    TA = 3 * 8 + 4 * 4
    NCH = (4096 - 8 * TA) // (4 * NB)
    assert NCH * 4 * NB + 8 * TA == 4096
    CHUNK = 4 * NB * TILE
    a = Asm(); e = a
    hdr = open("standalone__gqa_block_cached__decode.s.ref").read().split("; Override")[0]
    a.raw(hdr.rstrip())
    a.raw("; @launch grid=(256,1,1) block=(512,1,1) lds=%d" % LDS_BYTES)
    a.raw('.amdgcn_target "amdgcn-amd-amdhsa--gfx950"')
    a.raw(".text"); a.raw(".globl " + NAME); a.raw(".p2align 8"); a.raw(".type %s,@function" % NAME)
    a.label(NAME)
    sW, sH, sS = "s3", "s4", "s5"
    sOFF, sNEXT, sIT, sBASE, sTAG, sMASK, sC, sCNT, sT0, sT1, sSPIN = "s28", "s29", "s30", "s31", "s32", "s33", "s34", "s35", "s6", "s7", "s52"
    vOFF, vA, vB, vP, vT0, vT1, vM, vNMC, vL, vTK, vTKA = ["v%d" % i for i in range(1, 12)]
    Q0, ACC, SL = 12, 24, 48
    vLANE = "v240"; vZERO = "v241"; vG8 = "v242"; vC16 = "v243"
    nstamp = [0]
    def stamp(k):
        if ts: e("s_memrealtime s[%d:%d]" % (60 + 2 * k, 61 + 2 * k))
    def kreg(j): return SL + 24 * j
    def vreg(j): return SL + 24 * j + 12
    def srd(d, lo, nbytes):
        e("s_mov_b32 s%d, s%d" % (d, lo)); e("s_mov_b32 s%d, s%d" % (d + 1, lo + 1))
        e("s_mov_b32 s%d, 0x%x" % (d + 2, nbytes)); e("s_mov_b32 s%d, 0x20000" % (d + 3))
    def tile_loads(base, sr):
        for i in range(3):
            e("buffer_load_dwordx4 v[%d:%d], %s, s[%d:%d], %s offen offset:%d nt" % (base + 4 * i, base + 4 * i + 3, vOFF, sr, sr + 3, sOFF, 128 * i))

    e("s_cmp_ge_u32 s2, 256"); e("s_cbranch_scc1 L_end")
    e("s_load_dwordx16 s[36:51], s[0:1], 0")
    if ts:
        for k in range(8): e("s_mov_b32 s%d, 0" % (60 + 2 * k))
    stamp(0)
    e("v_lshrrev_b32 v2, 6, v0")
    e("v_and_b32 %s, 63, v0" % vLANE)
    e("v_readfirstlane_b32 %s, v2" % sW)
    e("v_lshrrev_b32 %s, 3, %s" % (vG8, vLANE))
    e("v_and_b32 %s, 7, %s" % (vC16, vLANE))
    e("v_lshlrev_b32 %s, 4, %s" % (vC16, vC16))
    e("v_mul_u32_u24 v5, 384, %s" % vG8)
    e("v_add_u32 %s, v5, %s" % (vOFF, vC16))
    if ts: e("s_mov_b32 %s, 0" % sIT); e("s_mov_b32 %s, 0" % sSPIN)
    e("s_lshr_b32 %s, s2, 3" % sH); e("s_and_b32 %s, s2, 7" % sS)
    e("s_mul_i32 %s, %s, %d" % (sBASE, sH, HS))
    e("s_mov_b32 %s, 0xffff0000" % sMASK); e("s_mov_b32 %s, %s" % (sC, f32(C_SCALE)))
    e("v_mov_b32 %s, 0" % vZERO)
    e("s_cmp_eq_u32 %s, 0" % sW)
    e("s_waitcnt lgkmcnt(0)")
    e("s_cbranch_scc1 L_coord")
    srd(8, 38, 32 * HS); srd(12, 40, 32 * HS)
    e("s_mul_i32 %s, %s, %d" % (sT0, sS, TA * TILE)); e("s_add_u32 %s, %s, %s" % (sT0, sT0, sBASE))
    e("s_cmp_lt_u32 %s, 4" % sW); e("s_cbranch_scc1 L_one")
    e("s_sub_u32 %s, %s, 4" % (sT1, sW))
    wofs, stride = (TILE, 4 * TILE) if inter else (NB * TILE, TILE)
    e("s_mul_i32 %s, %s, %d" % (sOFF, sT1, wofs))
    e("s_add_u32 %s, %s, %s" % (sBASE, sBASE, sOFF)); e("s_add_u32 %s, %s, %d" % (sBASE, sBASE, 8 * TA * TILE))
    e("s_mul_i32 %s, %s, %d" % (sOFF, sS, CHUNK)); e("s_add_u32 %s, %s, %s" % (sOFF, sOFF, sBASE))
    n = 0
    for j in range(4):
        if n >= W: e("s_waitcnt vmcnt(%d)" % (6 * (W - 1)))
        tile_loads(kreg(j), 8); tile_loads(vreg(j), 12); n += 1
        if j < 3: e("s_add_u32 %s, %s, %d" % (sOFF, sOFF, stride))
    e("s_mul_i32 %s, %s, %d" % (sOFF, sT1, 4 * TILE)); e("s_add_u32 %s, %s, %s" % (sOFF, sOFF, sT0)); e("s_add_u32 %s, %s, %d" % (sOFF, sOFF, 24 * TILE))
    for j in range(4, 8):
        if n >= W: e("s_waitcnt vmcnt(%d)" % (6 * (W - 1)))
        tile_loads(kreg(j), 8); tile_loads(vreg(j), 12); n += 1
        if j < 7: e("s_add_u32 %s, %s, %d" % (sOFF, sOFF, TILE))
    e("s_branch L_pre")
    a.label("L_one")
    e("s_sub_u32 %s, %s, 1" % (sT1, sW))
    e("s_mul_i32 %s, %s, %d" % (sOFF, sT1, 8 * TILE)); e("s_add_u32 %s, %s, %s" % (sOFF, sOFF, sT0))
    n = 0
    for j in (4, 5, 6, 7, 0, 1, 2, 3):
        if n >= W1: e("s_waitcnt vmcnt(%d)" % (6 * (W1 - 1)))
        tile_loads(kreg(j), 8); tile_loads(vreg(j), 12); n += 1
        if n < 8: e("s_add_u32 %s, %s, %d" % (sOFF, sOFF, TILE))
    a.label("L_pre")
    stamp(1)
    srd(16, 50, WS_SIZE)
    e("v_mov_b32 %s, 0xff800000" % vM); e("v_mov_b32 %s, 0" % vL); e("v_mov_b32 %s, 0" % vNMC)
    for i in range(24): e("v_mov_b32 v%d, 0" % (ACC + i))
    e("v_mov_b32 %s, %d" % (vTKA, L_TK))
    e("s_lshl_b32 %s, %s, 8" % (sCNT, sH)); e("s_add_u32 %s, %s, %d" % (sCNT, sCNT, WS_CNT))
    e("s_add_u32 %s, %s, 8" % (sNEXT, sS)); e("s_mov_b32 %s, 0" % sIT)
    e("s_barrier")
    stamp(2)
    for j in range(3): e("ds_read_b128 v[%d:%d], %s offset:%d" % (Q0 + 4 * j, Q0 + 4 * j + 3, vC16, L_Q + 128 * j))
    e("ds_read_b32 %s, %s offset:%d" % (vT0, vZERO, L_TAG))
    e("s_waitcnt lgkmcnt(0)")
    e("v_readfirstlane_b32 %s, %s" % (sTAG, vT0))
    e("s_cmp_lt_u32 %s, 4" % sW); e("s_cbranch_scc1 L_hi")

    uid = [0]
    def step(j, wk, wv, refill):
        k, v = kreg(j), vreg(j)
        e("s_waitcnt vmcnt(%d)" % wk)
        for i in range(12):
            acc = vA if i % 2 == 0 else vB
            e("v_dot2_f32_bf16 %s, v%d, v%d, %s" % (acc, k + i, Q0 + i, "0" if i < 2 else acc))
        if refill: tile_loads(k, 8)
        e("v_add_f32 %s, %s, %s" % (vA, vA, vB))
        e("v_add_f32_dpp %s, %s, %s quad_perm:[1,0,3,2] row_mask:0xf bank_mask:0xf" % (vA, vA, vA))
        e("v_add_f32_dpp %s, %s, %s quad_perm:[2,3,0,1] row_mask:0xf bank_mask:0xf" % (vA, vA, vA))
        e("v_add_f32_dpp %s, %s, %s row_half_mirror row_mask:0xf bank_mask:0xf" % (vA, vA, vA))
        uid[0] += 1; lab = "L_nr%d" % uid[0]
        e("v_cmp_gt_f32 vcc, %s, %s" % (vA, vM))
        e("s_cbranch_vccz %s" % lab)
        e("v_max_f32 %s, %s, %s" % (vB, vA, vM))
        e("v_sub_f32 %s, %s, %s" % (vT0, vM, vB))
        e("v_mul_f32 %s, %s, %s" % (vT0, sC, vT0))
        e("v_exp_f32 %s, %s" % (vT0, vT0))
        e("v_mov_b32 %s, %s" % (vM, vB))
        e("v_mul_f32 %s, %s, %s" % (vNMC, sC, vB))
        e("v_mul_f32 %s, %s, %s" % (vL, vL, vT0))
        for i in range(24): e("v_mul_f32 v%d, v%d, %s" % (ACC + i, ACC + i, vT0))
        a.label(lab)
        e("v_fma_f32 %s, %s, %s, -%s" % (vP, vA, sC, vNMC))
        e("v_exp_f32 %s, %s" % (vP, vP))
        e("s_waitcnt vmcnt(%d)" % wv)
        e("v_add_f32 %s, %s, %s" % (vL, vL, vP))
        for i in range(12):
            e("v_lshlrev_b32 %s, 16, v%d" % (vT0, v + i))
            e("v_and_b32 %s, %s, v%d" % (vT1, sMASK, v + i))
            e("v_fmac_f32 v%d, %s, %s" % (ACC + 2 * i, vP, vT0))
            e("v_fmac_f32 v%d, %s, %s" % (ACC + 2 * i + 1, vP, vT1))
        if refill:
            tile_loads(v, 12)
            if j < NB - 1: e("s_add_u32 %s, %s, %d" % (sOFF, sOFF, stride))

    a.label("L_loop")
    e("s_cmp_ge_u32 %s, %d" % (sNEXT, NCH)); e("s_cbranch_scc1 L_tail")
    e("s_add_u32 %s, %s, 1" % (sIT, sIT))
    e("s_cmp_lt_u32 %s, %d" % (sIT, NS - 1)); e("s_cbranch_scc1 L_noat")
    e("s_cmp_lg_u32 %s, 4" % sW); e("s_cbranch_scc1 L_noat")
    e("s_mov_b64 exec, 1"); e("v_mov_b32 %s, 1" % vTK)
    e("buffer_atomic_add %s, %s, s[16:19], %s offen sc0 sc1" % (vTK, vZERO, sCNT))
    e("s_mov_b64 exec, -1")
    a.label("L_noat")
    e("s_mul_i32 %s, %s, %d" % (sOFF, sNEXT, CHUNK)); e("s_add_u32 %s, %s, %s" % (sOFF, sOFF, sBASE))
    for j in range(NB): step(j, 21, 21, True)
    e("s_cmp_eq_u32 %s, 1" % sIT); e("s_cbranch_scc1 L_hi")
    a.label("L_next")
    e("s_cmp_ge_u32 %s, %d" % (sIT, NS - 1)); e("s_cbranch_scc1 L_dyn")
    e("s_add_u32 %s, %s, 8" % (sNEXT, sNEXT)); e("s_branch L_loop")
    a.label("L_dyn")
    e("s_cmp_lg_u32 %s, 4" % sW); e("s_cbranch_scc1 L_poll")
    e("s_waitcnt vmcnt(24)")
    e("v_add_u32 %s, %d, %s" % (vTK, NS * 8, vTK))
    e("s_mov_b64 exec, 1"); e("ds_write_b32 %s, %s" % (vTKA, vTK)); e("s_mov_b64 exec, -1")
    e("v_readfirstlane_b32 %s, %s" % (sNEXT, vTK))
    e("v_add_u32 %s, 4, %s" % (vTKA, vTKA))
    e("s_branch L_loop")
    a.label("L_poll")
    e("ds_read_b32 %s, %s" % (vTK, vTKA)); e("s_waitcnt lgkmcnt(0)")
    e("v_readfirstlane_b32 %s, %s" % (sNEXT, vTK))
    e("s_cmp_lg_u32 %s, -1" % sNEXT); e("s_cbranch_scc1 L_got")
    e("s_sleep 1"); e("s_branch L_poll")
    a.label("L_got")
    e("v_add_u32 %s, 4, %s" % (vTKA, vTKA))
    e("s_branch L_loop")
    a.label("L_hi")
    for j in range(4): step(4 + j, 24 + 6 * (4 - j) - 3, 24 + 6 * (3 - j), False)
    e("s_cmp_ge_u32 %s, 4" % sW); e("s_cbranch_scc1 L_next")
    a.label("L_tail")
    stamp(3)
    for j in range(4): step(j, 6 * (4 - j) - 3, 6 * (3 - j), False)
    stamp(4)
    def xl_reduce1(v, op, t0, t1):
        e("%s_dpp %s, %s, %s row_ror:8 row_mask:0xf bank_mask:0xf" % (op, v, v, v))
        for pm in ("v_permlane16_swap_b32", "v_permlane32_swap_b32"):
            e("v_mov_b32 %s, %s" % (t0, v))
            e("%s %s, %s" % (pm, t0, v))
            e("%s %s, %s, %s" % (op, v, v, t0))
    def acc_reduce(b):
        for k in range(12): e("v_permlane32_swap_b32 v%d, v%d" % (b + k, b + k + 12))
        for k in range(12): e("v_add_f32 v%d, v%d, v%d" % (b + k, b + k, b + k + 12))
        for k in range(6): e("v_permlane16_swap_b32 v%d, v%d" % (b + k, b + k + 6))
        for k in range(6): e("v_add_f32 v%d, v%d, v%d" % (b + k, b + k, b + k + 6))
        for k in range(6): e("v_add_f32_dpp v%d, v%d, v%d row_ror:8 row_mask:0xf bank_mask:0xf" % (b + k, b + k, b + k))
    e("v_mov_b32 %s, %s" % (vA, vM))
    xl_reduce1(vA, "v_max_f32", vT0, vT1)
    e("v_sub_f32 %s, %s, %s" % (vT0, vM, vA))
    e("v_mul_f32 %s, %s, %s" % (vT0, sC, vT0))
    e("v_exp_f32 %s, %s" % (vP, vT0))
    e("v_lshrrev_b32 %s, 4, %s" % (vT0, vLANE)); e("v_lshlrev_b32 %s, 3, %s" % (vT0, vT0))
    e("v_and_b32 %s, 7, %s" % (vT1, vLANE)); e("v_add_u32 %s, %s, %s" % (vT0, vT0, vT1))
    e("v_mul_u32_u24 %s, 24, %s" % (vT0, vT0))
    e("s_mul_i32 %s, %s, 800" % (sT0, sW))
    e("v_add_u32 %s, %s, %s" % (vTKA, sT0, vT0))
    e("v_mov_b32 %s, %s" % (vTK, sT0))
    e("v_mul_f32 %s, %s, %s" % (vB, vL, vP))
    for i in range(24): e("v_mul_f32 v%d, v%d, %s" % (ACC + i, ACC + i, vP))
    acc_reduce(ACC)
    xl_reduce1(vB, "v_add_f32", vT0, vT1)
    for u in range(3): e("ds_write_b64 %s, v[%d:%d] offset:%d" % (vTKA, ACC + 2 * u, ACC + 2 * u + 1, L_PART + 8 * u))
    e("ds_write_b64 %s, v[2:3] offset:%d" % (vTK, L_PART + 768))
    e("s_cmp_lt_u32 %s, 4" % sW); e("s_cbranch_scc1 L_help")
    e("s_waitcnt lgkmcnt(0)")
    e("s_barrier")
    stamp(5)
    e("s_cmp_lg_u32 %s, 4" % sW); e("s_cbranch_scc1 L_wait3")
    e("v_and_b32 %s, 31, %s" % (vT0, vLANE)); e("v_mul_u32_u24 %s, 24, %s" % (vT0, vT0))
    e("v_lshrrev_b32 %s, 5, %s" % (vT1, vLANE)); e("v_mul_u32_u24 %s, 3200, %s" % (vT1, vT1))
    e("v_add_u32 %s, %s, %s" % (vT0, vT0, vT1))
    G = 48
    for i in range(4): e("ds_read_b64 v[%d:%d], %s offset:%d" % (G + 24 + 2 * i, G + 25 + 2 * i, vT1, L_PART + 800 * i + 768))
    for i in range(4):
        for u in range(3): e("ds_read_b64 v[%d:%d], %s offset:%d" % (G + 6 * i + 2 * u, G + 6 * i + 2 * u + 1, vT0, L_PART + 800 * i + 8 * u))
    e("v_lshlrev_b32 %s, 4, %s" % (vOFF, vLANE))
    e("s_lshl_b32 %s, s2, 11" % sT0); e("s_add_u32 %s, %s, %d" % (sT0, sT0, WS_OP))
    e("s_waitcnt lgkmcnt(12)" if not ts else "s_waitcnt lgkmcnt(0)")
    e("v_max_f32 %s, v%d, v%d" % (vA, G + 24, G + 26)); e("v_max_f32 %s, v%d, v%d" % (vB, G + 28, G + 30))
    e("v_max_f32 %s, %s, %s" % (vA, vA, vB))
    e("v_mov_b32 %s, %s" % (vB, vA)); e("v_permlane32_swap_b32 %s, %s" % (vB, vA)); e("v_max_f32 %s, %s, %s" % (vA, vA, vB))
    for i in range(4):
        e("v_sub_f32 v%d, v%d, %s" % (G + 24 + 2 * i, G + 24 + 2 * i, vA))
    for i in range(4):
        e("v_mul_f32 v%d, %s, v%d" % (G + 24 + 2 * i, sC, G + 24 + 2 * i))
    for i in range(4):
        e("v_exp_f32 v%d, v%d" % (G + 24 + 2 * i, G + 24 + 2 * i))
    e("s_waitcnt lgkmcnt(0)")
    O = [96, 98, 104, 105, 100, 102]
    for t in range(6): e("v_mul_f32 v%d, v%d, v%d" % (O[t], G + t, G + 24))
    e("v_mul_f32 v107, v%d, v%d" % (G + 25, G + 24))
    for i in range(1, 4):
        for t in range(6): e("v_fmac_f32 v%d, v%d, v%d" % (O[t], G + 6 * i + t, G + 24 + 2 * i))
        e("v_fmac_f32 v107, v%d, v%d" % (G + 25 + 2 * i, G + 24 + 2 * i))
    e("v_mul_f32 v106, 0.5, %s" % vA)
    for r in (97, 99, 101, 103): e("v_mov_b32 v%d, %s" % (r, sTAG))
    for x, y in ((96, 104), (98, 105), (100, 106), (102, 107)): e("v_permlane32_swap_b32 v%d, v%d" % (x, y))
    for x, y in ((96, 104), (98, 105), (100, 106), (102, 107)): e("v_add_f32 v%d, v%d, v%d" % (x, x, y))
    e("buffer_store_dwordx4 v[96:99], %s, s[16:19], %s offen sc1" % (vOFF, sT0))
    e("buffer_store_dwordx4 v[100:103], %s, s[16:19], %s offen offset:1024 sc1" % (vOFF, sT0))
    stamp(6)
    a.label("L_wait3")
    e("s_cmp_ge_u32 %s, 5" % sS); e("s_cbranch_scc1 L_fin")
    e("s_barrier")
    e("s_branch L_fin")

    a.label("L_coord")
    if prio: e("s_setprio 3")
    srd(20, 42, 640 * 12288); srd(24, 36, 1280); srd(16, 50, WS_SIZE)
    e("v_mul_u32_u24 v6, 20, %s" % vG8)
    e("s_mul_i32 %s, %s, 160" % (sT0, sS))
    e("buffer_load_dword v17, %s, s[16:19], 0 offen sc1" % vZERO)
    e("buffer_load_dwordx4 v[12:15], v6, s[24:27], %s offen" % sT0)
    e("buffer_load_dword v16, v6, s[24:27], %s offen offset:16" % sT0)
    e("s_mov_b32 %s, %d" % (sT1, 10 * 12288))
    e("v_mul_lo_u32 v5, %s, %s" % (vG8, sT1)); e("v_add_u32 %s, v5, %s" % (vOFF, vC16))
    e("s_mul_i32 %s, %s, %d" % (sOFF, sS, 80 * 12288)); e("s_mul_i32 %s, %s, 384" % (sT1, sH)); e("s_add_u32 %s, %s, %s" % (sOFF, sOFF, sT1))
    for t in range(10):
        tile_loads(SL + 12 * t, 20)
        if t < 9: e("s_add_u32 %s, %s, 12288" % (sOFF, sOFF))
    e("s_lshl_b32 %s, %s, 8" % (sCNT, sH)); e("s_add_u32 %s, %s, %d" % (sCNT, sCNT, WS_CNT))
    e("s_cmp_lg_u32 %s, 0" % sS); e("s_cbranch_scc1 L_noz")
    e("buffer_store_dword %s, %s, s[16:19], %s offen sc1" % (vZERO, vZERO, sCNT))
    a.label("L_noz")
    e("v_lshlrev_b32 v6, 4, %s" % vLANE)
    for r in range(20, 24): e("v_mov_b32 v%d, -1" % r)
    e("ds_write_b128 v6, v[20:23] offset:%d" % L_TK)
    for i in range(24): e("v_mov_b32 v%d, 0" % (ACC + i))
    e("v_mul_u32_u24 v7, 12, %s" % vLANE)
    e("ds_write_b96 v7, v[24:26] offset:%d" % L_PART) if False else [e("ds_write_b32 v7, v24 offset:%d" % (L_PART + 4 * i)) for i in range(3)]
    e("v_mov_b32 v8, 0xff7fffff"); e("v_mov_b32 v9, 0")
    e("ds_write_b64 %s, v[8:9] offset:%d" % (vZERO, L_PART + 768))
    e("s_waitcnt vmcnt(30)")
    stamp(1)
    e("v_readfirstlane_b32 %s, v17" % sTAG)
    XF = 176
    for i in range(5):
        e("v_lshlrev_b32 v%d, 16, v%d" % (XF + 2 * i, 12 + i)); e("v_and_b32 v%d, %s, v%d" % (XF + 2 * i + 1, sMASK, 12 + i))
    e("s_mul_i32 %s, %s, 0x9E3779B1" % (sTAG, sTAG)); e("s_add_u32 %s, %s, 0x7F4A7C15" % (sTAG, sTAG))
    for t in range(10):
        e("s_waitcnt vmcnt(%d)" % (3 * (9 - t)))
        for i in range(12):
            r = SL + 12 * t + i
            e("v_lshlrev_b32 %s, 16, v%d" % (vT0, r)); e("v_and_b32 %s, %s, v%d" % (vT1, sMASK, r))
            e("v_fmac_f32 v%d, v%d, %s" % (ACC + 2 * i, XF + t, vT0)); e("v_fmac_f32 v%d, v%d, %s" % (ACC + 2 * i + 1, XF + t, vT1))
    stamp(2)
    acc_reduce(ACC)
    e("v_lshrrev_b32 %s, 4, %s" % (vT0, vLANE)); e("v_lshlrev_b32 %s, 7, %s" % (vT0, vT0)); e("v_add_u32 %s, %s, %s" % (vT0, vT0, vC16))
    e("s_lshl_b32 %s, s2, 11" % sT0); e("s_add_u32 %s, %s, %d" % (sT0, sT0, WS_QP))
    for u in range(3):
        b = 48 + 4 * u
        e("v_mov_b32 v%d, v%d" % (b, ACC + 2 * u)); e("v_mov_b32 v%d, %s" % (b + 1, sTAG))
        e("v_mov_b32 v%d, v%d" % (b + 2, ACC + 2 * u + 1)); e("v_mov_b32 v%d, %s" % (b + 3, sTAG))
        e("buffer_store_dwordx4 v[%d:%d], %s, s[16:19], %s offen offset:%d sc1" % (b, b + 3, vT0, sT0, 512 * u))
    stamp(3)
    e("v_and_b32 %s, 31, %s" % (vT0, vLANE)); e("v_lshlrev_b32 %s, 4, %s" % (vT0, vT0))
    e("v_lshrrev_b32 %s, 5, %s" % (vT1, vLANE)); e("v_lshlrev_b32 %s, 11, %s" % (vT1, vT1)); e("v_add_u32 %s, %s, %s" % (vT0, vT0, vT1))
    e("s_lshl_b32 %s, %s, 14" % (sT0, sH)); e("s_add_u32 %s, %s, %d" % (sT0, sT0, WS_QP))
    e("s_mov_b32 %s, %d" % (sSPIN, spin))
    G = 64
    def poll(name, n, G, loads):
        a.label(name)
        loads()
        e("s_waitcnt vmcnt(0)")
        e("v_xor_b32 %s, %s, v%d" % (vA, sTAG, G + 1))
        for k in range(1, 2 * n):
            e("v_xor_b32 %s, %s, v%d" % (vB, sTAG, G + 2 * k + 1)); e("v_or_b32 %s, %s, %s" % (vA, vA, vB))
        e("v_cmp_ne_u32 vcc, 0, %s" % vA)
        e("s_cbranch_vccz %s_ok" % name)
        e("s_sub_u32 %s, %s, 1" % (sSPIN, sSPIN)); e("s_cmp_lg_u32 %s, 0" % sSPIN)
        e("s_cbranch_scc1 %s" % name)
        a.label(name + "_ok")
    def qloads():
        e("s_mov_b32 %s, %s" % (sOFF, sT0))
        for i in range(4):
            for u in range(3):
                b = G + 12 * i + 4 * u
                e("buffer_load_dwordx4 v[%d:%d], %s, s[16:19], %s offen offset:%d sc1" % (b, b + 3, vT0, sOFF, 512 * u))
            if i < 3: e("s_add_u32 %s, %s, 4096" % (sOFF, sOFF))
    poll("L_pq", 12, G, qloads)
    stamp(4)
    for t in range(6):
        e("v_add_f32 v%d, v%d, v%d" % (G + 2 * t, G + 2 * t, G + 12 + 2 * t)); e("v_add_f32 v%d, v%d, v%d" % (G + 24 + 2 * t, G + 24 + 2 * t, G + 36 + 2 * t))
    for t in range(6): e("v_add_f32 v%d, v%d, v%d" % (G + 2 * t, G + 2 * t, G + 24 + 2 * t))
    for t in range(6): e("v_mov_b32 v%d, v%d" % (G + 2 * t + 1, G + 2 * t))
    for t in range(6): e("v_permlane32_swap_b32 v%d, v%d" % (G + 2 * t, G + 2 * t + 1))
    for t in range(6): e("v_add_f32 v%d, v%d, v%d" % (G + 2 * t, G + 2 * t, G + 2 * t + 1))
    e("v_and_b32 %s, 3, %s" % (vT0, vG8)); e("v_mul_u32_u24 %s, 6, %s" % (vT0, vT0))
    for u in range(3):
        e("v_cvt_pk_bf16_f32 v%d, v%d, v%d" % (G + 1, G + 4 * u, G + 4 * u + 2))
        e("v_add_u32 %s, %d, %s" % (vT1, 2 * u, vT0))
        e("v_lshrrev_b32 %s, 3, %s" % (vA, vT1)); e("v_lshlrev_b32 %s, 7, %s" % (vA, vA))
        e("v_and_b32 %s, 7, %s" % (vT1, vT1)); e("v_lshlrev_b32 %s, 1, %s" % (vT1, vT1))
        e("v_add3_u32 %s, %s, %s, %s" % (vA, vA, vT1, vC16))
        e("ds_write_b32 %s, v%d offset:%d" % (vA, G + 1, L_Q))
    e("v_mov_b32 %s, %s" % (vT0, sTAG))
    e("ds_write_b32 %s, %s offset:%d" % (vZERO, vT0, L_TAG))
    e("s_waitcnt lgkmcnt(0)")
    e("s_barrier")
    if prio: e("s_setprio 0")
    a.label("L_help")
    e("s_cmp_ge_u32 %s, 5" % sS); e("s_cbranch_scc1 L_help_no")
    srd(20, 44, 6144 * 1280)
    e("v_lshrrev_b32 %s, 3, %s" % (vT0, vLANE)); e("v_xor_b32 %s, 1, %s" % (vT1, vT0))
    e("v_mul_u32_u24 %s, %d, %s" % (vT0, 8 * 1280, vT0)); e("v_mul_u32_u24 %s, %d, %s" % (vT1, 8 * 1280, vT1))
    e("v_and_b32 %s, 15, %s" % (vA, vLANE)); e("v_lshlrev_b32 %s, 4, %s" % (vA, vA))
    e("v_add_u32 %s, %s, %s" % (vT0, vT0, vA)); e("v_add_u32 %s, %s, %s" % (vT1, vT1, vA))
    e("s_mul_i32 %s, %s, %d" % (sBASE, sH, 192 * 1280)); e("s_lshl_b32 %s, %s, 8" % (sT0, sS)); e("s_add_u32 %s, %s, %s" % (sBASE, sBASE, sT0))
    WR = 48
    WF = 96
    for t in range(6):
        e("s_mul_i32 %s, %s, 6" % (sT0, sW)); e("s_add_u32 %s, %s, %d" % (sT0, sT0, t))
        e("s_lshr_b32 %s, %s, 3" % (sT1, sT0)); e("s_lshl_b32 %s, %s, 6" % (sT1, sT1)); e("s_and_b32 %s, %s, 7" % (sT0, sT0)); e("s_add_u32 %s, %s, %s" % (sT0, sT0, sT1))
        e("s_mul_i32 %s, %s, 1280" % (sT0, sT0)); e("s_add_u32 %s, %s, %s" % (sT0, sT0, sBASE))
        e("buffer_load_dwordx4 v[%d:%d], %s, s[20:23], %s offen nt" % (WR + 4 * t, WR + 4 * t + 3, vT0, sT0))
        e("buffer_load_dwordx4 v[%d:%d], %s, s[20:23], %s offen nt" % (WR + 24 + 4 * t, WR + 24 + 4 * t + 3, vT1, sT0))
    e("v_and_b32 %s, 7, %s" % (vA, vLANE)); e("v_lshlrev_b32 %s, 11, %s" % (vA, vA))
    e("v_lshrrev_b32 %s, 3, %s" % (vB, vLANE)); e("v_lshlrev_b32 %s, 4, %s" % (vB, vB)); e("v_add_u32 %s, %s, %s" % (vOFF, vA, vB))
    e("s_lshl_b32 %s, %s, 14" % (sT0, sH)); e("s_lshl_b32 %s, %s, 7" % (sT1, sW)); e("s_add_u32 %s, %s, %s" % (sT0, sT0, sT1)); e("s_add_u32 %s, %s, %d" % (sT0, sT0, WS_OP))
    e("v_and_b32 %s, 15, %s" % (vA, vLANE)); e("v_lshlrev_b32 %s, 5, %s" % (vA, vA))
    e("v_lshrrev_b32 %s, 4, %s" % (vB, vLANE)); e("v_lshlrev_b32 %s, 3, %s" % (vB, vB))
    e("s_lshl_b32 %s, %s, 9" % (sT1, sW))
    e("v_add3_u32 %s, %s, %s, %s" % (vTKA, vA, vB, sT1))
    e("s_mov_b32 %s, %d" % (sSPIN, spin))
    e("s_waitcnt vmcnt(0)")
    for i in range(48):
        e("v_lshlrev_b32 v%d, 16, v%d" % (WF + 2 * i, WR + i)); e("v_and_b32 v%d, %s, v%d" % (WF + 2 * i + 1, sMASK, WR + i))
    e("s_waitcnt lgkmcnt(0)")
    e("s_barrier")
    stamp(5)
    G = 48
    def oloads():
        for u in range(4):
            e("buffer_load_dwordx4 v[%d:%d], %s, s[16:19], %s offen offset:%d sc1" % (G + 4 * u, G + 4 * u + 3, vOFF, sT0, 512 * u))
    poll("L_po", 4, G, oloads)
    stamp(6)
    D8 = ("quad_perm:[1,0,3,2]", "quad_perm:[2,3,0,1]", "row_half_mirror")
    vm, vl = G + 12, G + 14
    e("v_mov_b32 %s, v%d" % (vA, vm))
    for d in D8: e("v_max_f32_dpp %s, %s, %s %s row_mask:0xf bank_mask:0xf" % (vA, vA, vA, d))
    e("v_sub_f32 %s, v%d, %s" % (vA, vm, vA)); e("v_mul_f32 %s, %s, %s" % (vA, sC, vA)); e("v_exp_f32 %s, %s" % (vA, vA))
    e("v_mul_f32 %s, v%d, %s" % (vB, vl, vA))
    for t in range(6): e("v_mul_f32 v%d, v%d, %s" % (G + 2 * t, G + 2 * t, vA))
    for d in D8:
        e("v_add_f32_dpp %s, %s, %s %s row_mask:0xf bank_mask:0xf" % (vB, vB, vB, d))
        for t in range(6): e("v_add_f32_dpp v%d, v%d, v%d %s row_mask:0xf bank_mask:0xf" % (G + 2 * t, G + 2 * t, G + 2 * t, d))
    e("v_rcp_f32 %s, %s" % (vB, vB))
    for t in range(6): e("v_mov_b32_dpp v%d, v%d row_ror:8 row_mask:0xf bank_mask:0xf" % (G + 2 * t + 1, G + 2 * t))
    Y = 24
    for ab in range(2):
        for t in range(6):
            for c in range(8):
                wreg = WF + 2 * (24 * ab + 4 * t) + c
                if ab == 0 and t == 0: e("v_mul_f32 v%d, v%d, v%d" % (Y + c, G + 2 * t + ab, wreg))
                else: e("v_fmac_f32 v%d, v%d, v%d" % (Y + c, G + 2 * t + ab, wreg))
    for k in range(4): e("v_permlane32_swap_b32 v%d, v%d" % (Y + k, Y + k + 4))
    for k in range(4): e("v_add_f32 v%d, v%d, v%d" % (Y + k, Y + k, Y + k + 4))
    for k in range(2): e("v_permlane16_swap_b32 v%d, v%d" % (Y + k, Y + k + 2))
    for k in range(2): e("v_add_f32 v%d, v%d, v%d" % (Y + k, Y + k, Y + k + 2))
    for k in range(2): e("v_mul_f32 v%d, v%d, %s" % (Y + k, Y + k, vB))
    e("ds_write_b64 %s, v[%d:%d] offset:%d" % (vTKA, Y, Y + 1, L_Y))
    e("s_waitcnt lgkmcnt(0)")
    e("s_barrier")
    e("s_cmp_lg_u32 %s, 0" % sW); e("s_cbranch_scc1 L_fin")
    e("v_lshlrev_b32 %s, 3, %s" % (vT0, vLANE))
    for w in range(4): e("ds_read_b64 v[%d:%d], %s offset:%d" % (G + 2 * w, G + 2 * w + 1, vT0, L_Y + 512 * w))
    e("v_lshrrev_b32 %s, 3, %s" % (vA, vLANE)); e("v_lshlrev_b32 %s, 12, %s" % (vA, vA))
    e("v_and_b32 %s, 7, %s" % (vB, vLANE)); e("v_lshlrev_b32 %s, 4, %s" % (vB, vB)); e("v_add_u32 %s, %s, %s" % (vA, vA, vB))
    e("s_lshl_b32 %s, %s, 15" % (sT0, sS)); e("s_lshl_b32 %s, %s, 7" % (sT1, sH)); e("s_add_u32 %s, %s, %s" % (sT0, sT0, sT1)); e("s_add_u32 %s, %s, %d" % (sT0, sT0, WS_YP))
    e("v_mov_b32 v%d, %s" % (Y + 1, sTAG)); e("v_mov_b32 v%d, %s" % (Y + 3, sTAG))
    e("s_waitcnt lgkmcnt(0)")
    for k in range(2):
        e("v_add_f32 v%d, v%d, v%d" % (G + k, G + k, G + 2 + k)); e("v_add_f32 v%d, v%d, v%d" % (G + 4 + k, G + 4 + k, G + 6 + k))
    for k in range(2): e("v_add_f32 v%d, v%d, v%d" % (Y + 2 * k, G + k, G + 4 + k))
    e("buffer_store_dwordx4 v[%d:%d], %s, s[16:19], %s offen sc1" % (Y, Y + 3, vA, sT0))
    stamp(7)
    e("s_branch L_fin")
    a.label("L_help_no")
    e("s_sub_u32 %s, %s, 5" % (sT0, sS)); e("s_lshl_b32 %s, %s, 5" % (sT0, sT0)); e("s_add_u32 %s, %s, %s" % (sIT, sT0, sH))
    srd(24, 46, 1280)
    e("v_lshlrev_b32 %s, 4, %s" % (vOFF, vLANE))
    e("s_lshl_b32 %s, %s, 12" % (sT0, sIT)); e("s_add_u32 %s, %s, %d" % (sT0, sT0, WS_YP))
    e("s_mov_b32 %s, %d" % (sSPIN, spin))
    e("s_waitcnt lgkmcnt(0)")
    e("s_barrier")
    stamp(5)
    e("s_cmp_lg_u32 %s, 0" % sW); e("s_cbranch_scc1 L_fin")
    e("s_cmp_ge_u32 %s, 40" % sIT); e("s_cbranch_scc1 L_fin")
    def yloads():
        for u in range(4):
            e("buffer_load_dwordx4 v[%d:%d], %s, s[16:19], %s offen offset:%d sc1" % (G + 4 * u, G + 4 * u + 3, vOFF, sT0, 1024 * u))
    poll("L_py", 4, G, yloads)
    stamp(6)
    for k in (0, 2):
        e("v_add_f32 v%d, v%d, v%d" % (G + k, G + k, G + 4 + k)); e("v_add_f32 v%d, v%d, v%d" % (G + 8 + k, G + 8 + k, G + 12 + k))
    for k in (0, 2): e("v_add_f32 v%d, v%d, v%d" % (G + k, G + k, G + 8 + k))
    xl_reduce1("v%d" % G, "v_add_f32", vT0, vT1)
    xl_reduce1("v%d" % (G + 2), "v_add_f32", vT1, vT0)
    e("v_cvt_pk_bf16_f32 %s, v%d, v%d" % (vA, G, G + 2))
    e("v_lshlrev_b32 %s, 2, %s" % (vB, vLANE))
    e("s_lshl_b32 %s, %s, 5" % (sT0, sIT))
    e("s_mov_b64 exec, 0xff")
    e("buffer_store_dword %s, %s, s[24:27], %s offen" % (vA, vB, sT0))
    e("s_cmp_lg_u32 %s, 0" % sIT); e("s_cbranch_scc1 L_noep")
    e("s_mov_b64 exec, 1")
    e("v_mov_b32 %s, %s" % (vT0, sTAG))
    e("buffer_store_dword %s, %s, s[16:19], 0 offen sc1" % (vT0, vZERO))
    a.label("L_noep")
    e("s_mov_b64 exec, -1")
    stamp(7)
    a.label("L_fin")
    if ts:
        e("s_getreg_b32 s76, hwreg(HW_REG_XCC_ID)"); e("s_getreg_b32 s77, hwreg(HW_REG_HW_ID)")
        e("s_waitcnt lgkmcnt(0)")
        for k in range(8): e("v_mov_b32 v%d, s%d" % (48 + k, 60 + 2 * k))
        e("v_mov_b32 v56, s76"); e("v_mov_b32 v57, s77"); e("v_mov_b32 v58, %s" % sIT); e("v_mov_b32 v59, %s" % sSPIN)
        e("s_lshl_b32 %s, s2, 3" % sT0); e("s_add_u32 %s, %s, %s" % (sT0, sT0, sW)); e("s_lshl_b32 %s, %s, 6" % (sT0, sT0)); e("s_add_u32 %s, %s, %d" % (sT0, sT0, WS_TS))
        e("s_mov_b64 exec, 1")
        for k in range(3): e("buffer_store_dwordx4 v[%d:%d], %s, s[16:19], %s offen offset:%d" % (48 + 4 * k, 51 + 4 * k, vZERO, sT0, 16 * k))
    a.label("L_end")
    e("s_endpgm")
    a.raw('.section .rodata,"a"'); a.raw(".p2align 6"); a.raw(".amdhsa_kernel " + NAME)
    a.raw("  .amdhsa_next_free_vgpr 256"); a.raw("  .amdhsa_next_free_sgpr 96"); a.raw("  .amdhsa_accum_offset 256")
    a.raw("  .amdhsa_group_segment_fixed_size 0"); a.raw("  .amdhsa_kernarg_size 64"); a.raw("  .amdhsa_user_sgpr_count 2")
    a.raw("  .amdhsa_user_sgpr_kernarg_segment_ptr 1"); a.raw("  .amdhsa_system_sgpr_workgroup_id_x 1"); a.raw(".end_amdhsa_kernel")
    return a.text()

if __name__ == "__main__":
    for spec in sys.argv[1:]:
        name, _, kv = spec.partition(":")
        kw = {}
        for p in kv.split(","):
            if not p: continue
            k, v = p.split("=")
            kw[k] = int(v) if v.lstrip("-").isdigit() else v
        open(name, "w").write(gen(**kw))
```
